```python
import torch

def _softmax(x, axis=-1):
    return torch.softmax(x, dim=axis)
def _gelu(x):
    return torch.nn.functional.gelu(x, approximate="tanh")
def _silu(x):
    return torch.nn.functional.silu(x)
def _sigmoid(x):
    return torch.sigmoid(x)
def _layernorm(x, axis=-1, eps=1e-5):
    m = x.mean(dim=axis, keepdim=True)
    v = x.var(dim=axis, keepdim=True, unbiased=False)
    return (x - m) / torch.sqrt(v + eps)
def _scatter_add(tgt, idx, src, axis=0):
    return tgt.clone().index_add_(axis, idx, src)
def _segment_sum(src, seg, n):
    out = torch.zeros((n,) + src.shape[1:], dtype=src.dtype)
    return out.index_add_(0, seg, src)
def _pad(x, pw):
    flat = tuple(v for pair in reversed(pw) for v in pair)
    return torch.nn.functional.pad(x, flat)

kernel_name = 'concat_heads__compressed_kv_cla__grouped_kv_mqa__prompt'

def setup_inputs():

    _w = (lambda a: (lambda t: t.to(torch.bfloat16) if t.is_floating_point() else t)(torch.as_tensor(a)))
    def _A_setup():
        B, H, Sq, Sk, D, M = 1, 32, 2048, 2048, 128, 640
        Dc = 4 * D
        return {
            "x": _w((lambda *s: torch.randn(*s, dtype=torch.bfloat16) * 0.4)(B, Sq, M)),
            "c_kv": _w((lambda *s: torch.randn(*s, dtype=torch.bfloat16) * 1.6)(B, Sk, Dc)),
            "w_q": _w((lambda *s: torch.randn(*s, dtype=torch.bfloat16) * 3.2)(M, H, D) * (M ** -0.5)),
            "w_uk": _w((lambda *s: torch.randn(*s, dtype=torch.bfloat16) * 3.2)(Dc, H, D) * (Dc ** -0.5)),
            "w_uv": _w((lambda *s: torch.randn(*s, dtype=torch.bfloat16) * 1.6)(Dc, H, D) * (Dc ** -0.5)),
            "w_o": _w((lambda *s: torch.randn(*s, dtype=torch.bfloat16) * 1.6)(H, D, M) * ((H * D) ** -0.5)),
        }
    _A_in = _A_setup()

    def _B_setup():
        B, S, D, H = 1, 2048, 640, 32
        Dh = D // H
        return {
            "x": _w((lambda *s: torch.randn(*s, dtype=torch.bfloat16) * 0.1)(B, S, D)),
            "wq": _w((lambda *s: torch.randn(*s, dtype=torch.bfloat16) * 0.8)(D, H * Dh)),
            "wk": _w((lambda *s: torch.randn(*s, dtype=torch.bfloat16) * 0.8)(D, Dh)),
            "wv": _w((lambda *s: torch.randn(*s, dtype=torch.bfloat16) * 0.4)(D, Dh)),
            "wo": _w((lambda *s: torch.randn(*s, dtype=torch.bfloat16) * 0.4)(H * Dh, D)),
        }
    _B_in = _B_setup()

    return {
        "A_x": _A_in["x"],
        "A_c_kv": _A_in["c_kv"],
        "A_w_q": _A_in["w_q"],
        "A_w_uk": _A_in["w_uk"],
        "A_w_uv": _A_in["w_uv"],
        "A_w_o": _A_in["w_o"],
        "B_x": _B_in["x"],
        "B_wq": _B_in["wq"],
        "B_wk": _B_in["wk"],
        "B_wv": _B_in["wv"],
        "B_wo": _B_in["wo"],
    }

def reference(A_x, A_c_kv, A_w_q, A_w_uk, A_w_uv, A_w_o, B_x, B_wq, B_wk, B_wv, B_wo):
    def _A_ref(x, c_kv, w_q, w_uk, w_uv, w_o):
        B, Sq, M = x.shape[0], x.shape[1], x.shape[2]
        Sk = c_kv.shape[1]
        H, D = w_q.shape[1], w_q.shape[2]
        q = torch.einsum("bqm,mhd->bhqd", x, w_q)
        k = torch.einsum("bkc,chd->bhkd", c_kv, w_uk)
        v = torch.einsum("bkc,chd->bhkd", c_kv, w_uv)
        scores = torch.einsum("bhqd,bhkd->bhqk", q, k) * (D ** -0.5)
        off = Sk - Sq
        qi = torch.arange(Sq)[:, None]
        kj = torch.arange(Sk)[None, :]
        cmask = kj <= (qi + off)
        scores = torch.where(cmask[None, None], scores, -1e9)
        p = _softmax(scores, axis=-1)
        ctx = torch.einsum("bhqk,bhkd->bhqd", p, v)
        return torch.einsum("bhqd,hdm->bqm", ctx, w_o)

    def _B_ref(x, wq, wk, wv, wo):
        B, S, D = x.shape
        H = 32
        Dh = D // H
        q = (lambda x, *d: x.permute(*d))((x @ wq).reshape(B, S, H, Dh), 0, 2, 1, 3)
        k = x @ wk
        v = x @ wv
        scores = torch.einsum("bhqd,bkd->bhqk", q, k) * (Dh ** -0.5)
        p = _softmax(scores, axis=-1)
        o = torch.einsum("bhqk,bkd->bhqd", p, v)
        return (lambda x, *d: x.permute(*d))(o, 0, 2, 1, 3).reshape(B, S, H * Dh) @ wo

    a = _A_ref(A_x, A_c_kv, A_w_q, A_w_uk, A_w_uv, A_w_o)
    b = _B_ref(B_x, B_wq, B_wk, B_wv, B_wo)
    return torch.concatenate([a, b], axis=-1)
```

```python
class Asm:
    def __init__(self):
        self.lines = []
    def __call__(self, *ls):
        for l in ls:
            for x in l.split("\n"):
                x = x.strip()
                if x: self.lines.append(x)
    def label(self, name): self.lines.append(name + ":")
    def text(self):
        return "".join((l + "\n") if l.endswith(":") or l.startswith(".") else ("    " + l + "\n") for l in self.lines)

def v(i, n=1): return f"v{i}" if n == 1 else f"v[{i}:{i+n-1}]"
def a(i, n=1): return f"a{i}" if n == 1 else f"a[{i}:{i+n-1}]"
def s(i, n=1): return f"s{i}" if n == 1 else f"s[{i}:{i+n-1}]"

class Stream:
    def __init__(self):
        self.m = []; self.sh = []; self.va = []
    def mfma(self, line):
        self.m.append(line); self.sh.append([]); self.va.append([]); return len(self.m) - 1
    def shadow(self, g, line): self.sh[g].append(line)
    def valu(self, g, line): self.va[g].append(line)
    def free_shadow(self, g0, g1=None, step=1):
        g = g0
        while self.sh[g]: g += step
        if g1 is not None: assert g <= g1, (g0, g1)
        return g
    def emit(self, A):
        for m, sh, va in zip(self.m, self.sh, self.va):
            A(m); A(*sh); A(*va)

def srd(A, d, ptr, size):
    A(f"s_mov_b32 s{d}, s{ptr}", f"s_mov_b32 s{d+1}, s{ptr+1}", f"s_mov_b32 s{d+2}, {size}", f"s_mov_b32 s{d+3}, 0x00020000")

def kdesc(name, nv=512, acc=256):
    import os
    DENORM = os.environ.get('DENORM', '3')
    return f""".section .rodata,"a"
.p2align 6
.amdhsa_kernel {name}
  .amdhsa_next_free_vgpr {nv}
  .amdhsa_next_free_sgpr 102
  .amdhsa_accum_offset {acc}
  .amdhsa_group_segment_fixed_size 0
  .amdhsa_kernarg_size 112
  .amdhsa_user_sgpr_count 2
  .amdhsa_user_sgpr_kernarg_segment_ptr 1
  .amdhsa_system_sgpr_workgroup_id_x 1
  .amdhsa_float_denorm_mode_32 {DENORM}
.end_amdhsa_kernel
.text
"""

def khead(name):
    return f""".globl {name}
.p2align 8
.type {name},@function
{name}:
"""

WS_KV   = 0
WS_Q    = 32 << 20
WS_CTX  = 80 << 20
CTXQ = 148*4096
WS_WOF  = 104 << 20
WS_QB   = 64 << 20
WS_KB   = 68 << 20
WS_KB1  = (68 << 20) + (1 << 19)
WS_VB   = 69 << 20
WS_SIZE = 0x10000000
OOB     = 0x40000000

import os
DIAG = bool(os.environ.get("DIAG"))
WS_DBG = 200 << 20
S_DBG = 96
def stamp_init(A, kidx, srd_ws, s_wave):
    if not DIAG: return
    A(f"s_lshl_b32 s96, s2, 2", f"s_add_u32 s96, s96, s{s_wave}", f"s_lshl_b32 s96, s96, 8", f"s_add_u32 s96, s96, {WS_DBG + (kidx << 20)}")
def stamp(A, srd_ws, vt, real=False):
    if not DIAG: return
    A(f"{'s_memrealtime' if real else 's_memtime'} s[98:99]", "s_waitcnt lgkmcnt(0)", f"v_mov_b32 v{vt}, s98", f"v_mov_b32 v{vt+1}, 0",
      "s_mov_b64 s[100:101], exec", "s_mov_b64 exec, 1",
      f"buffer_store_dword v{vt}, v{vt+1}, s[{srd_ws}:{srd_ws+3}], s96 offen", "s_mov_b64 exec, s[100:101]", "s_add_u32 s96, s96, 4")

KA = 64
def load_kernargs(A):
    A("s_load_dwordx16 s[64:79], s[0:1], 0", "s_load_dwordx8 s[80:87], s[0:1], 64", "s_load_dwordx4 s[88:91], s[0:1], 96")
P_X, P_CKV, P_WQ, P_WUK, P_WUV, P_WO, P_BX, P_BWQ, P_BWK, P_BWV, P_BWO, P_OUT, P_DBG, P_WS = [KA + 2*i for i in range(14)]
```

```python
from asmlib import *
import struct, os
def f2u(x): return struct.unpack("<I", struct.pack("<f", x))[0]
LOG2E = 1.4426950408889634
SCALE_A = f2u(LOG2E / 128 ** 0.5)
SCALE_B = f2u(LOG2E / 20 ** 0.5)

SLOT = 40960
V_LANE, V_DMA, V_T0, V_T1, V_B0, V_B1, V_ST, V_X = 1, 2, 3, 4, 5, 6, 7, 11
ACC = 16; RING = 48; TMP = 128; XE = 192
S_W, S_X, S_WS = 8, 12, 16
S_WAVE, S_RB, S_C, S_CNT, S_COL, S_SOFF, S_DSLOT, S_RSLOT, S_ST, S_STP, S_SCALE, S_P, S_NCH = 20,21,22,23,24,25,26,27,28,29,30,31,32
S_RT = 34
S_T = 40
S_MBASE = 38
S_WSTR = 39
S_HMUL = 33
V_XA, V_XB, V_XR = 12, 13, 14
P1_LDS = 163840

def xreg(ks, rt):
    return a((ks*4+rt)*4, 4) if ks < 16 else v(XE + ((ks-16)*4+rt)*4, 4)
def accreg(nb, rt): return ACC + nb*16 + rt*4

def store_soff(A, typ, dst=S_ST):
    t = S_T
    if typ in ('K', 'V'):
        A(f"s_lshr_b32 s{t}, s{S_P}, 2", f"s_lshl_b32 s{t}, s{t}, 20", f"s_and_b32 s{t+1}, s{S_P}, 3",
          f"s_lshl_b32 s{t+1}, s{t+1}, {10 if typ == 'K' else 12}", f"s_add_u32 s{t}, s{t}, s{t+1}", f"s_add_u32 s{dst}, s{t}, s{S_MBASE}")
    else:
        A(f"s_lshr_b32 s{t}, s{S_P}, 2", f"s_mul_i32 s{t}, s{t}, s{S_HMUL}", f"s_and_b32 s{t+1}, s{S_P}, 3",
          f"s_lshl_b32 s{t+1}, s{t+1}, 10", f"s_add_u32 s{t}, s{t}, s{t+1}", f"s_add_u32 s{dst}, s{t}, s{S_MBASE}")

def epi_ops(typ, j):
    nb, rt = j // 4, j % 4
    d = accreg(nb, rt)
    va = []; st = []
    if typ == 'Q':
        va += [f"v_mul_f32 v{d+r}, s{S_SCALE}, v{d+r}" for r in range(4)]
    if typ in ('K', 'Q'):
        t = TMP + rt*4 + nb*2
        if nb == 1: st = [f"buffer_store_dwordx4 {v(TMP+rt*4,4)}, v{V_ST+rt}, {s(S_WS,4)}, {{S}} offen"]
    elif typ == 'V':
        kg = rt // 2
        t = TMP + (2*nb+kg)*4 + (rt % 2)*2
        if rt % 2 == 1: st = [f"buffer_store_dwordx4 {v(TMP+(2*nb+kg)*4,4)}, v{V_ST}, {s(S_WS,4)}, {{S}} offen offset:{(2*nb+kg)*1024}"]
    va += [f"v_cvt_pk_bf16_f32 v{t}, v{d}, v{d+1}", f"v_cvt_pk_bf16_f32 v{t+1}, v{d+2}, v{d+3}"]
    return va, st

def tr_reads(KS, G, buf):
    out = []
    for nb in range(2):
        for k in range(KS):
            ks = G*KS + k
            r = RING + (buf*2*KS + nb*KS + k)*4
            for j in range(2):
                out.append(f"ds_read_b64_tr_b16 {v(r+2*j,2)}, v{V_T0+nb} offset:{2048*ks+256*j}")
    return out

def mfma_line(typ, KS, G, nb, rt, k):
    ks = G*KS + k
    w = v(RING + ((G % 2)*2*KS + nb*KS + k)*4, 4)
    x = xreg(ks, rt)
    d = v(accreg(nb, rt), 4)
    c = "0" if ks == 0 else d
    if typ in ('V', 'VB'): return f"v_mfma_f32_16x16x32_bf16 {d}, {x}, {w}, {c}"
    return f"v_mfma_f32_16x16x32_bf16 {d}, {w}, {x}, {c}"

def dma_ops(ND):
    ops = []
    for i in range(ND):
        if i == 0: sal = [f"s_mov_b32 m0, s{S_DSLOT}", f"s_mov_b32 s{S_SOFF}, s{S_COL}"]
        else: sal = [f"s_add_u32 m0, m0, 1024", f"s_add_u32 s{S_SOFF}, s{S_SOFF}, s{S_WSTR}"]
        ops.append((sal, f"buffer_load_dwordx4 v{V_DMA}, {s(S_W,4)}, s{S_SOFF} offen lds"))
    return ops

def advance_chunk():
    return [f"s_add_u32 s{S_COL}, s{S_COL}, 64",
            f"s_sub_u32 s{S_NCH}, s{S_NCH}, 1",
            f"s_cmp_gt_i32 s{S_NCH}, 0",
            f"s_cselect_b32 s{S_COL}, s{S_COL}, s{S_T+6}",
            f"s_add_u32 s{S_DSLOT}, s{S_DSLOT}, {SLOT}",
            f"s_cmp_ge_u32 s{S_DSLOT}, s{S_T+7}",
            f"s_cselect_b32 s{S_T+5}, {3*SLOT}, 0",
            f"s_sub_u32 s{S_DSLOT}, s{S_DSLOT}, s{S_T+5}"]

def pass_body(A, typ):
    KS = 4 if typ in ('K', 'V') else 5
    NK = 4*KS; ND = NK//2; GM = 8*KS
    st = Stream()
    for G in range(4):
        for nb in range(2):
            for rt in range(4):
                for k in range(KS): st.mfma(mfma_line(typ, KS, G, nb, rt, k))
    N = 4*GM
    for G in range(4):
        rd = tr_reads(KS, (G+1) % 4, (G+1) % 2)
        for i, l in enumerate(rd): st.shadow(G*GM + i, l)
        if G != 2: st.shadow(G*GM + GM-1, "s_waitcnt lgkmcnt(0)")
    nstore = 4
    st.shadow(2*GM + GM-2, f"s_waitcnt vmcnt({ND+nstore+(1 if DIAG else 0)}) lgkmcnt(0)")
    st.shadow(2*GM + GM-1, "s_barrier")
    g = 2*GM + 4*KS
    st.shadow(g, f"s_add_u32 s{S_RSLOT}, s{S_RSLOT}, {SLOT}")
    st.shadow(g+1, f"s_cmp_ge_u32 s{S_RSLOT}, {3*SLOT}"); st.shadow(g+1, f"s_cselect_b32 s{S_T+5}, {3*SLOT}, 0")
    st.shadow(g+2, f"s_sub_u32 s{S_RSLOT}, s{S_RSLOT}, s{S_T+5}")
    st.valu(g+3, f"v_add_u32 v{V_T0}, s{S_RSLOT}, v{V_B0}"); st.valu(g+3, f"v_add_u32 v{V_T1}, s{S_RSLOT}, v{V_B1}")
    ops = dma_ops(ND)
    half = ND//2
    for i, (sal, d) in enumerate(ops):
        G = i // half; g = G*GM + 4*KS + 2*(i % half)
        for l in sal: st.shadow(g, l)
        st.shadow(g+1, d)
        assert g+1 < G*GM + GM-1
    adv = advance_chunk()
    for i, l in enumerate(adv): st.shadow(2*GM + i, l)
    for j in range(8):
        end = 3*GM + j*KS + KS-1
        g = end + 8
        va, stores = epi_ops(typ, j)
        sreg = S_ST
        if g >= N: g -= N; sreg = S_STP
        for i, l in enumerate(va): st.valu(g + i//2, l)
        gs = g + (len(va)-1)//2
        if sreg == S_ST and gs >= N - 1: gs = N - 1
        for l in stores: st.valu(gs, l.format(S=f"s{sreg}"))
    tmp = Asm(); store_soff(tmp, typ)
    for i, l in enumerate(tmp.lines): st.shadow(GM + i, l)
    lab = f"L_p1_{typ}"
    A.label(lab)
    st.shadow(N-4, f"s_mov_b32 s{S_STP}, s{S_ST}")
    st.shadow(N-3, f"s_add_u32 s{S_P}, s{S_P}, 1")
    st.shadow(N-2, f"s_sub_u32 s{S_CNT}, s{S_CNT}, 1")
    st.emit(A)
    stamp(A, S_WS, 14)
    A(f"s_cmp_lg_u32 s{S_CNT}, 0", f"s_cbranch_scc1 {lab}")
    A("s_nop 7")
    for j in range(8):
        end = 3*GM + j*KS + KS-1
        if end + 8 >= N:
            va, stores = epi_ops(typ, j)
            A(*va)
            for l in stores: A(l.format(S=f"s{S_STP}"))
    if DIAG: A("s_waitcnt vmcnt(0)")
    stamp(A, S_WS, 14); stamp(A, S_WS, 14, real=True)

def dma_voff(A, ND):
    t = S_T
    A(f"v_lshrrev_b32 v16, 2, v{V_LANE}", f"s_lshr_b32 s{t}, s{S_WSTR}, 4", f"v_mul_lo_u32 v{V_DMA}, v16, s{t}",
      f"v_lshrrev_b32 v17, 5, v{V_LANE}", f"v_lshlrev_b32 v17, 1, v17", f"v_and_b32 v18, 3, v{V_LANE}", f"v_xor_b32 v17, v17, v18",
      f"v_lshlrev_b32 v17, 4, v17", f"v_add_u32 v{V_DMA}, v{V_DMA}, v17",
      f"s_mul_i32 s{t}, s{S_WAVE}, {ND}", f"s_mul_i32 s{t}, s{t}, s{S_WSTR}", f"v_add_u32 v{V_DMA}, s{t}, v{V_DMA}")

STG_BASE = 2*SLOT
STG_WAVE = 20480
NSTG = int(os.environ.get('NSTG', 2))
PFMODE = os.environ.get('PFMODE', 'early')
MAP = os.environ.get('MAP', '4x8')
if NSTG == 3: STG_BASE = SLOT; STG_WAVE = 30720

def prefetch(A, ptr_off, nbytes, srdreg, vtmp, dst, first_line, nlines_per_wave):
    pass

def prologue_common(A, typ, rstride):
    KS = 4 if typ in ('K', 'V') else 5
    NK = 4*KS; ND = NK//2
    t = S_T
    dma_voff(A, ND)
    A(f"s_mul_i32 s{S_DSLOT}, s{S_WAVE}, {ND*1024}", f"s_add_u32 s{t+7}, s{S_DSLOT}, {3*SLOT}", f"s_mov_b32 s{t+6}, {OOB}")
    A(f"s_mov_b32 s{S_NCH}, s{S_CNT}", f"s_lshl_b32 s{S_COL}, s{S_P}, 6")
    def chunk():
        for sal, d in dma_ops(ND): A(*sal); A("s_nop 0"); A(d)
        A(*advance_chunk())
    A(f"v_lshrrev_b32 v16, 3, v{V_LANE}", f"v_mul_u32_u24 v16, {rstride}, v16",
      f"s_lshl_b32 s{t}, s{S_RB}, 2", f"s_add_u32 s{t}, s{t}, s{S_WAVE}", f"s_mul_i32 s{t}, s{t}, {64*rstride}", f"v_add_u32 v16, s{t}, v16",
      f"v_and_b32 v17, 7, v{V_LANE}", f"v_lshrrev_b32 v18, 4, v{V_LANE}", f"v_xor_b32 v17, v17, v18",
      f"v_lshl_add_u32 v{V_XA}, v17, 4, v16", f"v_xor_b32 v17, 4, v17", f"v_lshl_add_u32 v{V_XB}, v17, 4, v16")
    A(f"v_and_b32 v16, 15, v{V_LANE}", f"v_lshrrev_b32 v17, 1, v16", f"v_lshrrev_b32 v18, 4, v{V_LANE}", f"v_xor_b32 v17, v17, v18",
      f"v_lshlrev_b32 v17, 4, v17", f"v_lshl_add_u32 v{V_XR}, v16, 7, v17",
      f"s_mul_i32 s{S_RT}, s{S_WAVE}, {STG_WAVE}", f"s_add_u32 s{S_RT}, s{S_RT}, {STG_BASE}", f"v_add_u32 v{V_XR}, s{S_RT}, v{V_XR}",
      f"v_xor_b32 v{V_XR+1}, 64, v{V_XR}")
    def round_dma(r):
        for i in range(8):
            A(f"s_add_u32 m0, s{S_RT}, {(r % NSTG)*8192 + i*1024}", f"s_mov_b32 s{S_RT+1}, {i*8*rstride + r*128}",
              f"buffer_load_dwordx4 v{V_XA + (i & 1)}, {s(S_X,4)}, s{S_RT+1} offen lds")
    NR = NK//2
    for r in range(NSTG): round_dma(r)
    chunk()
    extra_vm = ND
    if PFMODE == 'early':
        PF.emit(A); extra_vm += PF.n
    if NSTG == 2: chunk(); extra_vm += ND
    A(f"v_lshrrev_b32 v16, 4, v{V_LANE}", f"v_bfe_u32 v17, v{V_LANE}, 2, 2", f"v_lshl_add_u32 v17, v16, 3, v17", f"v_lshlrev_b32 v17, 6, v17",
      f"v_and_b32 v18, 3, v{V_LANE}", f"v_lshl_add_u32 v17, v18, 3, v17",
      f"v_and_b32 v16, 1, v16", f"v_lshl_add_u32 v{V_B0}, v16, 5, v17", f"v_xor_b32 v{V_B1}, 32, v{V_B0}",
      f"v_mov_b32 v{V_T0}, v{V_B0}", f"v_mov_b32 v{V_T1}, v{V_B1}", f"s_mov_b32 s{S_RSLOT}, 0", f"s_mov_b32 s{S_STP}, {OOB}")
    stamp(A, S_WS, 20)
    if DIAG: extra_vm += 1
    for r in range(NR):
        if r < NSTG: n = 8*(NSTG-1-r) + extra_vm + 8*r
        else: n = 8*min(NSTG-1, NR-1-r)
        A(f"s_waitcnt vmcnt({min(n, 63)})")
        for kq in range(2):
            for rt in range(4):
                A(f"ds_read_b128 {xreg(2*r+kq, rt)}, v{V_XR+kq} offset:{(r % NSTG)*8192 + rt*2048}")
        if r + NSTG < NR:
            A("s_waitcnt lgkmcnt(0)")
            round_dma(r + NSTG)
    if PFMODE == 'late': PF.emit(A)
    stamp(A, S_WS, 20)
    if NSTG == 3:
        A("s_waitcnt lgkmcnt(0)", "s_barrier"); chunk()
    A("s_waitcnt vmcnt(0) lgkmcnt(0)", "s_barrier")
    stamp(A, S_WS, 20)
    A(*tr_reads(KS, 0, 0))
    A("s_waitcnt lgkmcnt(0)")

class Prefetch:
    def __init__(self): self.n = 0
    def emit(self, A):
        t = S_T
        self.n = 0
        A(f"s_lshl_b32 s{t}, s2, 2", f"s_add_u32 s{t}, s{t}, s{S_WAVE}")
        for (karg, nbytes) in ((P_WUK, 512*8192), (P_WUV, 512*8192), (P_WQ, 640*8192), (P_BWQ, 640*1280)):
            lines = nbytes // 128
            per = -(-lines // 1024)
            A(f"s_mul_i32 s{t+1}, s{t}, {per*128}", f"v_lshlrev_b32 v22, 7, v{V_LANE}")
            srd(A, 48, karg, nbytes)
            if per < 64: A(f"s_mov_b32 exec_lo, {hex(((1 << per) - 1) & 0xffffffff)}", f"s_mov_b32 exec_hi, {hex(((1 << per) - 1) >> 32)}")
            A(f"buffer_load_dword v23, v22, s[48:51], s{t+1} offen")
            if per < 64: A("s_mov_b64 exec, -1")
            self.n += 1
PF = Prefetch()

def kvb_tail(A):
    KS = 5; ND = 10; t = S_T
    A("s_waitcnt vmcnt(0) lgkmcnt(0)", "s_barrier", f"s_mov_b32 s{S_WSTR}, 640")
    dma_voff(A, ND)
    for m, typ in enumerate(('KB', 'VB')):
        srd(A, S_W, P_BWK + 2*m, 25600)
        A(f"s_mul_i32 s{S_DSLOT}, s{S_WAVE}, {ND*1024}", f"s_add_u32 s{S_DSLOT}, s{S_DSLOT}, {m*SLOT}", f"s_mov_b32 s{S_COL}, 0")
        for sal, d in dma_ops(ND): A(*sal); A("s_nop 0"); A(d)
    A("s_waitcnt vmcnt(0)", "s_barrier")
    for m, typ in enumerate(('KB', 'VB')):
        A(f"v_add_u32 v{V_T0}, {m*SLOT}, v{V_B0}", f"v_add_u32 v{V_T1}, {m*SLOT}, v{V_B1}")
        for G in range(4):
            A(*tr_reads(KS, G, G % 2)); A("s_waitcnt lgkmcnt(0)")
            for nb in range(2):
                for rt in range(4):
                    for k in range(KS): A(mfma_line(typ, KS, G, nb, rt, k))
        A("s_nop 7")
        for j in range(8):
            d = accreg(j//4, j % 4)
            A(f"v_cvt_pk_bf16_f32 v{TMP+2*j}, v{d}, v{d+1}", f"v_cvt_pk_bf16_f32 v{TMP+2*j+1}, v{d+2}, v{d+3}")
        A(f"s_lshl_b32 s{t+4}, s{S_RB}, 2", f"s_add_u32 s{t+4}, s{t+4}, s{S_WAVE}")
        if typ == 'KB':
            A(f"v_and_b32 v12, 15, v{V_LANE}", f"v_lshlrev_b32 v13, 3, v12", f"v_lshlrev_b32 v12, 4, v12",
              f"v_lshrrev_b32 v14, 5, v{V_LANE}", f"v_lshl_add_u32 v12, v14, 9, v12",
              f"v_bfe_u32 v14, v{V_LANE}, 4, 1", f"v_lshl_add_u32 v12, v14, 3, v12",
              f"s_lshl_b32 s{t+5}, s{t+4}, 11", f"s_add_u32 s{t+5}, s{t+5}, {WS_KB}",
              f"s_lshl_b32 s{t+4}, s{t+4}, 9", f"s_add_u32 s{t+4}, s{t+4}, {WS_KB1}")
            for rt in range(4): A(f"buffer_store_dwordx2 {v(TMP+2*rt,2)}, v12, {s(S_WS,4)}, s{t+5} offen offset:{1024*(rt//2)+256*(rt%2)}")
            A("s_mov_b64 exec, 0xffff")
            for rt in range(4): A(f"buffer_store_dwordx2 {v(TMP+8+2*rt,2)}, v13, {s(S_WS,4)}, s{t+4} offen offset:{128*rt}")
            A("s_mov_b64 exec, -1")
        else:
            A(f"v_and_b32 v12, 15, v{V_LANE}", f"v_lshlrev_b32 v12, 4, v12", f"v_bfe_u32 v13, v{V_LANE}, 4, 1", f"v_lshl_add_u32 v12, v13, 9, v12",
              f"v_lshrrev_b32 v13, 5, v{V_LANE}", f"v_lshl_add_u32 v12, v13, 3, v12",
              f"s_lshl_b32 s{t+4}, s{t+4}, 12", f"s_add_u32 s{t+4}, s{t+4}, {WS_VB}")
            for rt in range(4): A(f"buffer_store_dwordx2 {v(TMP+2*rt,2)}, v12, {s(S_WS,4)}, s{t+4} offen offset:{1024*rt}")
            A("s_mov_b32 exec_lo, 0x000f000f", "s_mov_b32 exec_hi, 0x000f000f")
            for rt in range(4): A(f"buffer_store_dwordx2 {v(TMP+8+2*rt,2)}, v12, {s(S_WS,4)}, s{t+4} offen offset:{1024*rt+256}")
            A("s_mov_b64 exec, -1")

def gen_p1():
    A = Asm()
    t = S_T
    A("s_cmp_ge_u32 s2, 256", "s_cbranch_scc1 L_p1_end")
    load_kernargs(A)
    A(f"v_and_b32 v{V_LANE}, 63, v0", "v_lshrrev_b32 v12, 6, v0", "s_nop 0", f"v_readfirstlane_b32 s{S_WAVE}, v12")
    if MAP == '4x8':
        A(f"s_and_b32 s{t}, s2, 1", f"s_lshl_b32 s{t}, s{t}, 2", f"s_bfe_u32 s{t+1}, s2, 0x20003", f"s_add_u32 s{S_RB}, s{t}, s{t+1}",
          f"s_bfe_u32 s{t}, s2, 0x20001", f"s_lshl_b32 s{t}, s{t}, 3", f"s_lshr_b32 s{t+1}, s2, 5", f"s_add_u32 s{S_C}, s{t}, s{t+1}")
    elif MAP == '2x16':
        A(f"s_and_b32 s{t}, s2, 3", f"s_lshl_b32 s{t}, s{t}, 1", f"s_bfe_u32 s{t+1}, s2, 0x10003", f"s_add_u32 s{S_RB}, s{t}, s{t+1}",
          f"s_bfe_u32 s{t}, s2, 0x10002", f"s_lshl_b32 s{t}, s{t}, 4", f"s_lshr_b32 s{t+1}, s2, 4", f"s_add_u32 s{S_C}, s{t}, s{t+1}")
    elif MAP == '1x32':
        A(f"s_and_b32 s{S_RB}, s2, 7", f"s_lshr_b32 s{S_C}, s2, 3")
    elif MAP == '8x4':
        A(f"s_bfe_u32 s{S_RB}, s2, 0x30003", f"s_and_b32 s{t}, s2, 7", f"s_lshl_b32 s{t}, s{t}, 2", f"s_lshr_b32 s{t+1}, s2, 6", f"s_add_u32 s{S_C}, s{t}, s{t+1}")
    A("s_waitcnt lgkmcnt(0)")
    srd(A, S_WS, P_WS, WS_SIZE)
    stamp_init(A, 0, S_WS, S_WAVE); stamp(A, S_WS, 14, real=True); stamp(A, S_WS, 14)
    A(f"s_cmp_ge_u32 s{S_C}, 30", "s_cbranch_scc1 L_p1_roleB", f"s_cmp_ge_u32 s{S_C}, 18", "s_cbranch_scc1 L_p1_roleQ",
      f"s_cmp_ge_u32 s{S_C}, 9", "s_cbranch_scc1 L_p1_roleV")
    def stv(shift_w, rtstride):
        A(f"s_mul_i32 s{t}, s{S_WAVE}, {shift_w}", f"v_lshl_add_u32 v{V_ST}, v{V_LANE}, 4, s{t}")
        for rt in range(1, 4): A(f"v_add_u32 v{V_ST+rt}, {rtstride*rt}, v{V_ST}")
    for typ in ('K', 'V'):
        if typ == 'V': A.label("L_p1_roleV"); A(f"s_sub_u32 s{S_C}, s{S_C}, 9")
        A(f"s_mul_i32 s{S_P}, s{S_C}, 14", f"s_min_u32 s{t}, s{S_C}, 2", f"s_add_u32 s{S_P}, s{S_P}, s{t}",
          f"s_cmp_lt_u32 s{S_C}, 2", f"s_cselect_b32 s{S_CNT}, 15, 14", f"s_mov_b32 s{S_WSTR}, {16*8192}")
        stv(32768, 4096)
        A(f"s_lshl_b32 s{S_MBASE}, s{S_RB}, 17", f"s_add_u32 s{S_MBASE}, s{S_MBASE}, {WS_KV + (16384 if typ == 'V' else 0)}")
        srd(A, S_W, P_WUK if typ == 'K' else P_WUV, 512*8192); srd(A, S_X, P_CKV, 2048*1024)
        prologue_common(A, typ, 1024)
        pass_body(A, typ)
        A("s_endpgm")
    A.label("L_p1_roleQ")
    A(f"s_sub_u32 s{t+1}, s{S_C}, 18")
    A(f"s_mul_i32 s{S_P}, s{t+1}, 10", f"s_min_u32 s{t}, s{t+1}, 8", f"s_add_u32 s{S_P}, s{S_P}, s{t}",
      f"s_cmp_lt_u32 s{t+1}, 8", f"s_cselect_b32 s{S_CNT}, 11, 10", f"s_mov_b32 s{S_WSTR}, {16*8192}", f"s_mov_b32 s{S_HMUL}, {1 << 19}")
    stv(16384, 4096)
    A(f"s_lshl_b32 s{S_MBASE}, s{S_RB}, 16", f"s_add_u32 s{S_MBASE}, s{S_MBASE}, {WS_Q}", f"s_mov_b32 s{S_SCALE}, {SCALE_A}")
    srd(A, S_W, P_WQ, 640*8192); srd(A, S_X, P_X, 2048*1280)
    A("s_branch L_p1_Qgo")
    A.label("L_p1_roleB")
    A(f"s_cmp_eq_u32 s{S_C}, 30", f"s_cselect_b32 s{S_P}, 0, 11", f"s_cselect_b32 s{S_CNT}, 11, 9", f"s_mov_b32 s{S_WSTR}, {16*1280}", f"s_mov_b32 s{S_HMUL}, 4096")
    stv(4*20480, 20480)
    A(f"s_mul_i32 s{S_MBASE}, s{S_RB}, {16*20480}", f"s_add_u32 s{S_MBASE}, s{S_MBASE}, {WS_QB}", f"s_mov_b32 s{S_SCALE}, {SCALE_B}")
    srd(A, S_W, P_BWQ, 640*1280); srd(A, S_X, P_BX, 2048*1280)
    A.label("L_p1_Qgo")
    prologue_common(A, 'Q', 1280)
    pass_body(A, 'Q')
    A(f"s_cmp_lg_u32 s{S_C}, 31", "s_cbranch_scc1 L_p1_end")
    kvb_tail(A)
    A.label("L_p1_end")
    A("s_endpgm")
    return khead("p1_kernel") + A.text() + kdesc("p1_kernel")
```

```python
from asmlib import *
import os
P2_LDS = 163840
KBASE = 65536; VBASE = 0
S_WS = 8
S_WAVE, S_HEAD, S_QB, S_CNT, S_KOFF, S_VOFF, S_KD, S_VD, S_KR, S_VR = 20, 21, 22, 23, 24, 25, 26, 27, 28, 29
S_T = 12
S_W4K = 30
S_W4KK = 31
S_MASK = 32
V_LANE, V_L16, V_DMA, V_K, V_V, V_NINF, V_L16K = 1, 2, 3, 4, 5, 6, 7
V_T = 8
SB = [16, 80]; PB = [144, 176]; CI = 208; LS = 224; CM = 240
AO = 0; AQ = 128; AR = 192

def sreg(par, cb, t): return SB[par] + cb*16 + t*4
def ring(f): return a(AR + 4*f, 4)

def cost(line):
    if line.startswith("ds_read"): return 4
    if line.startswith("buffer_"): return 8
    return 0

def sched_valu(st, exps, smalls, ncarry=0):
    n = len(st.m)
    carry = [x[1] for x in smalls[len(smalls)-ncarry:]] if ncarry else []
    if ncarry: smalls = smalls[:len(smalls)-ncarry]
    bud = []
    for g in range(n):
        sh = st.sh[g]
        c = (cost(sh[0]) if sh else 0) + sum(max(4, cost(x) + 4) for x in sh[1:]) + 4*len(st.va[g])
        bud.append(max(0, 8 - c))
    E = len(exps); S = len(smalls)
    over = max(0, -(-(8*E + 4*S - sum(bud)) // 4))
    order = [g for g in range(n)]
    k = 0
    for i in range(over):
        g = min(n - 1, int((i + 0.5) * n / over))
        bud[g] += 4
    F = sum(b // 8 for b in bud)
    ie = 0; isml = 0; fi = 0
    for g in range(n):
        b = bud[g]; before = ie
        rem_full = sum(x // 8 for x in bud[g:])
        while b >= 8:
            fi += 1
            want = -(-fi*E // max(F, 1)) + 1
            nready = sum(1 for x in smalls[isml:isml+2] if x[0] <= before)
            if ie < E and (ie < want or nready < 2 or E - ie >= rem_full):
                st.valu(g, exps[ie]); ie += 1; b -= 8; rem_full -= 1
            else: break
        while b >= 4 and isml < S and smalls[isml][0] <= before:
            st.valu(g, smalls[isml][1]); isml += 1; b -= 4
    tail = []
    while ie < E: tail.append(exps[ie]); ie += 1
    if tail: tail.append("s_nop 0")
    while isml < S: tail.append(smalls[isml][1]); isml += 1
    st.stats = (n, over, len(tail))
    return tail, carry

def sm_ops(par, cbs):
    exps = []; smalls = []
    for cb in cbs:
        for r in range(0, 16, 2):
            x = SB[par] + cb*16 + r
            exps += [f"v_exp_f32 v{x}, v{x}", f"v_exp_f32 v{x+1}, v{x+1}"]
            l0 = LS + cb*4 + (r % 4)
            smalls += [(len(exps)-1, f"v_add_f32 v{l0}, v{x}, v{l0}"), (len(exps), f"v_add_f32 v{l0+1}, v{x+1}, v{l0+1}"),
                       (len(exps), f"v_cvt_pk_bf16_f32 v{PB[par] + cb*8 + r//2}, v{x}, v{x+1}")]
    return exps, smalls

def rd(f, kind):
    return f"ds_read_b128 {ring(f)}, v{V_K if kind == 'K' else V_V} offset:{1024*f}"

def adv_k(): return [f"s_add_u32 s{S_KR}, s{S_KR}, 16384", f"s_and_b32 s{S_KR}, s{S_KR}, 0xffff"]
def adv_v(): return [f"s_add_u32 s{S_VR}, s{S_VR}, 16384", f"s_and_b32 s{S_VR}, s{S_VR}, 0xffff"]

def dma_list(kind):
    so, sd, wb = (S_KOFF, S_KD, S_W4KK) if kind == 'K' else (S_VOFF, S_VD, S_W4K)
    out = [([f"s_add_u32 m0, s{sd}, s{wb}"], f"buffer_load_dwordx4 v{V_DMA}, {s(S_WS,4)}, s{so} offen lds")]
    for i in range(1, 4): out.append(([], f"buffer_load_dwordx4 v{V_DMA}, {s(S_WS,4)}, s{so} offen offset:{1024*i} lds"))
    post = [f"s_add_u32 s{so}, s{so}, 32768", f"s_add_u32 s{sd}, s{sd}, 16384", f"s_and_b32 s{sd}, s{sd}, 0xffff"]
    return out, post

def mask_c(A, cb, zero=False):
    for t in range(4):
        for r in range(4):
            src = "0" if zero else f"v{CI+cb*4}"
            A(f"v_cndmask_b32 v{CM+4*t+r}, v{V_NINF}, {src}, {s(S_MASK+2*(4*t+r),2)}" if not zero else
              f"v_cndmask_b32 v{CM+4*t+r}, v{V_NINF}, v{V_T}, {s(S_MASK+2*(4*t+r),2)}")

NCARRY = 3
def carry_ops(par):
    return [(0, x[1]) for x in sm_ops(par, [3])[1][-NCARRY:]]

def iteration(A, par, qk, mcb, sm, pv, nxt, dma, vm, loop_tail=None, cin=True):
    if mcb is not None: mask_c(A, mcb); A("s_nop 1")
    st = Stream()
    use = []
    npar = 1 - par
    for t in range(4):
        for cb in qk:
            for kk in range(4):
                d = v(sreg(npar, cb, t), 4)
                c = d if kk else (v(CM+4*t, 4) if cb == mcb else v(CI+4*cb, 4))
                st.mfma(f"v_mfma_f32_16x16x32_bf16 {d}, {ring(4*t+kk)}, {a(AQ+16*cb+4*kk,4)}, {c}"); use.append(('K', t))
    for db in range(8):
        for cb in pv:
            for kg in range(2):
                o = a(AO + 32*cb + 4*db, 4)
                st.mfma(f"v_mfma_f32_16x16x32_bf16 {o}, {ring(2*db+kg)}, {v(PB[npar]+8*cb+4*kg,4)}, {o}"); use.append(('V', db//2))
    n = len(st.m)
    first = {}; last = {}
    for i, u in enumerate(use): first.setdefault(u, i); last[u] = i
    groups = []
    lead = 'K' if qk else 'V'
    groups.append((0, lead, 3, 'cur'))
    if qk and pv:
        for G in range(4): groups.append((last[('K', G)], 'V', G, 'cur'))
    lastkind = 'V' if pv else 'K'
    bar_gap = None
    if nxt:
        for G in range(3): groups.append((last[(lastkind, G)], nxt, G, 'nxt'))
    if vm is not None:
        bar_gap = (last[(lastkind, 0)] - 1) if nxt else n // 2
        bar_gap = max(bar_gap, 6)
    spacing = max(1, min(4, (n // 8) // 4 * 1)) if n >= 64 else 1
    seq = [(lead, 0), (lead, 1), (lead, 2)]
    issue_gap = {}
    order = []
    g = -1
    if bar_gap is not None:
        st.shadow(bar_gap - 1, f"s_waitcnt vmcnt({vm})" + ("" if pv else " lgkmcnt(0)"))
        st.shadow(bar_gap, "s_barrier")
    for (e, kind, G, tag) in groups:
        if tag == 'nxt' and bar_gap is not None: e = max(e, bar_gap + 1)
        for i in range(4):
            g = max(g + spacing, e) if i else max(g + 1, e)
            g = min(g, n - 1)
            if g < n - 1:
                while g < n - 1 and st.sh[g]: g += 1
            st.shadow(g, rd(4*G + i, kind)); order.append((g, kind, G, tag))
    la = max(x[0] for x in order if x[1] == 'K' and x[3] == 'cur') if qk else None
    if qk and nxt == 'K':
        gg = la + 1
        for l in adv_k():
            gg = st.free_shadow(gg); st.shadow(gg, l); gg += 1
        st.valu(gg, f"v_add_u32 v{V_K}, s{S_KR}, v{V_L16K}")
        fn = min(x[0] for x in order if x[3] == 'nxt'); assert gg < fn, (gg, fn)
    if pv:
        lv = max(x[0] for x in order if x[1] == 'V' and x[3] == 'cur')
        if nxt == 'V':
            fn = min(x[0] for x in order if x[3] == 'nxt')
            for l in adv_v(): st.shadow(0, l)
            assert lv < fn, (lv, fn)
            st.valu(lv, f"v_add_u32 v{V_V}, s{S_VR}, v{V_L16}")
        elif nxt == 'K':
            gg = lv + 1
            for l in adv_v():
                gg = st.free_shadow(gg); st.shadow(gg, l); gg += 1
            st.valu(gg, f"v_add_u32 v{V_V}, s{S_VR}, v{V_L16}")
    covered = 4
    allreads = [(-1, lead, G, 'cur') for G in range(3) for _ in range(4)] + order
    for u in sorted(first, key=lambda u: first[u]):
        idx = max(i for i, x in enumerate(allreads) if (x[1], x[2]) == u and x[3] == 'cur')
        if idx < covered: continue
        gw = first[u] - 1
        assert allreads[idx][0] <= gw, (u, allreads[idx], gw)
        after = sum(1 for i, x in enumerate(allreads) if i > idx and x[0] <= gw)
        gfree = gw
        while st.sh[gfree] and gfree > allreads[idx][0] + 4 and gfree > gw - 6: gfree -= 1
        if st.sh[gfree]: gfree = gw
        after = sum(1 for i, x in enumerate(allreads) if i > idx and x[0] <= gfree)
        st.shadow(gfree, f"s_waitcnt lgkmcnt({after})")
        covered = idx + 1
    if dma:
        gg = bar_gap + 2
        room = n - 2 - gg
        nd = 4*len(dma)
        step = max(2, room // (nd + 3*len(dma)))
        for kind in dma:
            lst, post = dma_list(kind)
            for sal, d in lst:
                for l in sal:
                    gg = st.free_shadow(gg); st.shadow(gg, l); gg += 1
                gg = st.free_shadow(gg); st.shadow(gg, d); gg += step
            gp = gg - step + 1
            for l in post:
                gp = st.free_shadow(gp); st.shadow(gp, l); gp += 1
            gg = max(gg, gp)
    if loop_tail:
        gg = st.free_shadow(n - 4); st.shadow(gg, loop_tail[0])
    if nxt:
        gl = max(x[0] for x in order)
        gg = n - 1
        if st.sh[gg] and gl < n - 2 and not st.sh[n-2]: gg = n - 2
        st.shadow(gg, "s_waitcnt lgkmcnt(8)")
    exps, smalls = sm_ops(par, sm)
    if cin:
        c = carry_ops(1 - par)
        if not qk:
            A("s_nop 0"); A(*[x[1] for x in c]); A("s_nop 1")
        else: smalls = c + smalls
    tail, _ = sched_valu(st, exps, smalls, NCARRY if sm else 0)
    if os.environ.get("STATS"): print("iter", par, qk, sm, pv, st.stats)
    st.emit(A)
    A(*tail)
    if loop_tail: A(*loop_tail[1:])

def xlane(A, op, x, tmp):
    A(f"v_mov_b32 v{tmp}, v{x}", "s_nop 1", f"v_permlane16_swap_b32 v{x}, v{tmp}", "s_nop 1", f"{op} v{x}, v{x}, v{tmp}",
      f"v_mov_b32 v{tmp}, v{x}", "s_nop 1", f"v_permlane32_swap_b32 v{x}, v{tmp}", "s_nop 1", f"{op} v{x}, v{x}, v{tmp}")

def phase_a(A):
    t = S_T
    ALL = [0, 1, 2, 3]
    A(f"s_lshl_b32 s{S_KOFF}, s{S_HEAD}, 20", f"s_add_u32 s{S_VOFF}, s{S_KOFF}, 16384",
      f"s_mov_b32 s{S_KD}, 0", f"s_mov_b32 s{S_VD}, 0")
    def dma_now(kind):
        lst, post = dma_list(kind)
        for sal, d in lst:
            A(*sal)
            if sal: A("s_nop 0")
            A(d)
        A(*post)
    dma_now('K'); dma_now('K')
    A(f"s_lshl_b32 s{t}, s{S_HEAD}, 19", f"s_lshl_b32 s{t+1}, s{S_QB}, 16", f"s_add_u32 s{t}, s{t}, s{t+1}", f"s_add_u32 s{t}, s{t}, {WS_Q}")
    for cb in range(4):
        for kk in range(4): A(f"buffer_load_dwordx4 {a(AQ+16*cb+4*kk,4)}, v{V_DMA}, {s(S_WS,4)}, s{t} offen offset:{1024*kk}")
        if cb < 3: A(f"s_add_u32 s{t}, s{t}, 16384")
    dma_now('K'); dma_now('V')
    A(f"v_and_b32 v{V_T}, 15, v{V_LANE}", f"v_lshrrev_b32 v{V_T+1}, 4, v{V_LANE}", f"v_lshlrev_b32 v{V_T+1}, 2, v{V_T+1}",
      f"v_sub_u32 v{V_T}, v{V_T}, v{V_T+1}", f"s_lshl_b32 s{t}, s{S_WAVE}, 4", f"v_add_u32 v{V_T}, s{t}, v{V_T}")
    for tt in range(4):
        for r in range(4): A(f"v_cmp_le_i32 {s(S_MASK+2*(4*tt+r),2)}, {16*tt+r}, v{V_T}")
    for i in range(128): A(f"v_accvgpr_write_b32 a{AO+i}, 0")
    for i in range(16): A(f"v_mov_b32 v{LS+i}, 0")
    A(f"v_mov_b32 v{V_NINF}, 0xff800000", f"v_mov_b32 v{V_T}, 0")
    for i in range(16): A(f"v_mov_b32 v{CM+i}, 0")
    A(f"s_cmp_lg_u32 s{S_QB}, 0", "s_cbranch_scc1 L_a_nomask0")
    mask_c(A, 0, zero=True)
    A.label("L_a_nomask0")
    A(f"v_mov_b32 v{V_K}, v{V_L16K}", f"v_mov_b32 v{V_V}, v{V_L16}", f"s_mov_b32 s{S_KR}, 16384", f"s_mov_b32 s{S_VR}, 0")
    stamp(A, S_WS, V_T+2)
    A(f"s_waitcnt vmcnt({8 + (1 if DIAG else 0)})", "s_barrier")
    stamp(A, S_WS, V_T+2)
    for f in range(16): A(rd(f, 'K'))
    A(f"v_add_u32 v{V_K}, s{S_KR}, v{V_L16K}")
    for tt in range(4):
        A(f"s_waitcnt lgkmcnt({12 - 4*tt + (4*max(0, tt-1))})" if tt < 3 else "s_waitcnt lgkmcnt(8)")
        if tt == 3: A("s_barrier")
        for cb in ALL:
            for kk in range(4):
                d = v(sreg(0, cb, tt), 4)
                c = d if kk else (v(CM+4*tt, 4) if cb == 0 else "0")
                A(f"v_mfma_f32_16x16x32_bf16 {d}, {ring(4*tt+kk)}, {a(AQ+16*cb+4*kk,4)}, {c}")
        if tt < 3:
            for i in range(4): A(rd(4*tt+i, 'K'))
    dma_now('K'); dma_now('V')
    A("s_nop 4")
    for cb in ALL:
        b = sreg(0, cb, 0); m = V_T + 2
        A(f"v_max3_f32 v{m}, v{b}, v{b+1}, v{b+2}")
        for i in range(3, 15, 2): A(f"v_max3_f32 v{m}, v{b+i}, v{b+i+1}, v{m}")
        A(f"v_max_f32 v{m}, v{b+15}, v{m}")
        xlane(A, "v_max_f32", m, m+1)
        for i in range(4): A(f"v_sub_f32 v{CI+4*cb+i}, 0, v{m}")
        for i in range(16): A(f"v_sub_f32 v{b+i}, v{b+i}, v{m}")
    A("s_waitcnt lgkmcnt(8)")
    stamp(A, S_WS, V_T+2)
    D = 1 if DIAG else 0
    A(f"s_cmp_eq_u32 s{S_QB}, 0", "s_cbranch_scc1 L_a_qb0")
    A(f"s_lshl_b32 s{S_CNT}, s{S_QB}, 1", f"s_sub_u32 s{S_CNT}, s{S_CNT}, 1")
    iteration(A, 0, ALL, None, ALL, [], 'K', 'KV', 8 + D, cin=False)
    A(".p2align 6") if False else None
    A.label("L_a_loop")
    iteration(A, 1, ALL, None, ALL, ALL, 'K', 'KV', 8)
    iteration(A, 0, ALL, None, ALL, ALL, 'K', 'KV', 8, loop_tail=[f"s_sub_u32 s{S_CNT}, s{S_CNT}, 1", f"s_cmp_lg_u32 s{S_CNT}, 0", "s_cbranch_scc1 L_a_loop"])
    stamp(A, S_WS, V_T+2)
    iteration(A, 1, ALL, 0, ALL, ALL, 'K', 'KV', 8 + D)
    iteration(A, 0, [1, 2, 3], 1, ALL, ALL, 'K', 'V', 8)
    A("s_branch L_a_tail")
    A.label("L_a_qb0")
    iteration(A, 0, [1, 2, 3], 1, ALL, [], 'K', 'V', 8 + D, cin=False)
    A.label("L_a_tail")
    iteration(A, 1, [2, 3], 2, [1, 2, 3], ALL, 'K', 'V', 4)
    iteration(A, 0, [3], 3, [2, 3], [1, 2, 3], 'V', '', 4)
    iteration(A, 1, [], None, [3], [2, 3], 'V', '', 0)
    iteration(A, 0, [], None, [], [3], None, '', None)
    stamp(A, S_WS, V_T+2)
    A(f"s_mul_i32 s{t}, s{S_QB}, {4*CTXQ}", f"s_lshl_b32 s{t+1}, s{S_HEAD}, 14", f"s_add_u32 s{t}, s{t}, s{t+1}", f"s_add_u32 s{t}, s{t}, {WS_CTX}",
      f"s_lshl_b32 s{t+1}, s{S_WAVE}, 10", f"v_add_u32 v{V_T}, s{t+1}, v{V_L16}", f"v_add_u32 v{V_T+1}, 8192, v{V_T}")
    for cb in ALL:
        l = LS + 4*cb
        A(f"v_add_f32 v{l}, v{l}, v{l+1}", f"v_add_f32 v{l+2}, v{l+2}, v{l+3}", f"v_add_f32 v{l}, v{l}, v{l+2}")
        xlane(A, "v_add_f32", l, l+1)
        A(f"v_rcp_f32 v{l+1}, v{l}")
        tb = SB[0] + 32*(cb % 2)
        for i in range(32): A(f"v_accvgpr_read_b32 v{tb+i}, a{AO+32*cb+i}")
        for i in range(32): A(f"v_mul_f32 v{tb+i}, v{tb+i}, v{l+1}")
        pk = SB[1] + 16*cb
        for i in range(16): A(f"v_cvt_pk_bf16_f32 v{pk+i}, v{tb+2*i}, v{tb+2*i+1}")
        for i in range(4):
            A(f"buffer_store_dwordx4 {v(pk+4*i,4)}, v{V_T + i//2}, {s(S_WS,4)}, s{t} offen" + (" offset:0" if i % 2 == 0 else ""))
            if i % 2 == 0: A(f"s_add_u32 s{t}, s{t}, 4096")
            else: A(f"s_sub_u32 s{t}, s{t}, 4096")
        A(f"s_add_u32 s{t}, s{t}, {CTXQ}")
    stamp(A, S_WS, V_T+2)

def gen_p2():
    A = Asm(); t = S_T
    A("s_cmp_ge_u32 s2, 256", "s_cbranch_scc1 L_p2_end")
    load_kernargs(A)
    A(f"v_and_b32 v{V_LANE}, 63, v0", f"v_lshrrev_b32 v{V_T}, 6, v0", f"v_lshlrev_b32 v{V_L16}, 4, v{V_LANE}", f"v_readfirstlane_b32 s{S_WAVE}, v{V_T}")
    A(f"s_and_b32 s{t}, s2, 7", f"s_lshl_b32 s{t}, s{t}, 2", f"s_bfe_u32 s{t+1}, s2, 0x20003", f"s_add_u32 s{S_HEAD}, s{t}, s{t+1}",
      f"s_lshr_b32 s{t}, s2, 5", f"s_sub_u32 s{S_QB}, 7, s{t}", f"s_lshl_b32 s{S_W4K}, s{S_WAVE}, 12", f"v_add_u32 v{V_DMA}, s{S_W4K}, v{V_L16}",
      f"s_add_u32 s{S_W4KK}, s{S_W4K}, {KBASE}", f"v_add_u32 v{V_L16K}, {KBASE}, v{V_L16}")
    A("s_waitcnt lgkmcnt(0)")
    srd(A, S_WS, P_WS, WS_SIZE)
    stamp_init(A, 1, S_WS, S_WAVE); stamp(A, S_WS, V_T+2, real=True); stamp(A, S_WS, V_T+2)
    phase_a(A)
    if not os.environ.get("NOB"):
        import p2b
        p2b.phase_b(A)
    if DIAG: A("s_waitcnt vmcnt(0)")
    stamp(A, S_WS, V_T+2); stamp(A, S_WS, V_T+2, real=True)
    A.label("L_p2_end")
    A("s_endpgm")
    return khead("p2_kernel") + A.text() + kdesc("p2_kernel")
```

```python
from asmlib import *
from p2 import S_WS, S_WAVE, S_HEAD, S_QB, S_T, V_LANE, V_L16, V_T
import os
X = os.environ.get('BX', '').split(',')
NQ = [17, 15, 12, 9, 6, 4, 1, 0]
assert sum(NQ) == 64
AK0, AK1, AV, AKC0, AKC1 = 0, 64, 96, 224, 228
BS = [16, 32]; BP = [48, 56]; BO = 64; BC = 80; BQ0, BQ1, BQN0, BQN1 = 96, 100, 102, 106; BSM = 108; BR = 124
VA_Q = 172
VA_C = 175
VA_W = 178
VA_R = 179
BM = 180
VA_D = 184
S_N, S_I, S_Q, S_QOFF, S_COFF, S_RED, S_DOFF, S_ROFF = 23, 24, 25, 26, 27, 28, 29, 32

def kappa_addr(A, dst, kap, kstride_shift):
    A(f"v_lshrrev_b32 v{dst}, 3, v{kap}", f"v_lshlrev_b32 v{dst}, {kstride_shift}, v{dst}",
      f"v_and_b32 v{V_T+4}, 3, v{kap}", f"v_lshl_add_u32 v{dst}, v{V_T+4}, 8, v{dst}",
      f"v_bfe_u32 v{V_T+4}, v{kap}, 2, 1", f"v_lshl_add_u32 v{dst}, v{V_T+4}, 3, v{dst}")

def qoff_ops(sq, dst):
    t = S_T
    return [f"s_lshr_b32 s{t}, s{sq}, 4", f"s_mul_i32 s{t}, s{t}, 20480", f"s_and_b32 s{t+1}, s{sq}, 15", f"s_lshl_b32 s{t+1}, s{t+1}, 4",
            f"s_add_u32 s{t}, s{t}, s{t+1}", f"s_add_u32 s{dst}, s{t}, {WS_QB}"]

def qloads():
    return [f"buffer_load_dwordx2 {v(BQN0,2)}, v{VA_Q}, {s(S_WS,4)}, s{S_QOFF} offen",
            f"buffer_load_dwordx2 {v(BQN0+2,2)}, v{VA_Q+1}, {s(S_WS,4)}, s{S_QOFF} offen",
            "s_mov_b32 exec_hi, 0",
            f"buffer_load_dwordx2 {v(BQN1,2)}, v{VA_Q+2}, {s(S_WS,4)}, s{S_QOFF} offen",
            "s_mov_b32 exec_hi, -1"]

def qk(dst, k0, k1, q0, q1, c):
    return [f"v_mfma_f32_32x32x16_bf16 {v(dst,16)}, {a(k0,4)}, {v(q0,4)}, {c}",
            f"v_mfma_f32_32x32x8bf16_1k {v(dst,16)}, {a(k1,2)}, {v(q1,2)}, {v(dst,16)}"]
def pv(tile, par, first):
    return [f"v_mfma_f32_32x32x16_bf16 {v(BO,16)}, {a(AV+8*tile,4)}, {v(BP[par],4)}, {'0' if first else v(BO,16)}",
            f"v_mfma_f32_32x32x16_bf16 {v(BO,16)}, {a(AV+8*tile+4,4)}, {v(BP[par]+4,4)}, {v(BO,16)}"]
def max_ops():
    b = BSM; m = BM
    o = [f"v_max3_f32 v{m}, v{b}, v{b+1}, v{b+2}"]
    for i in range(3, 15, 2): o.append(f"v_max3_f32 v{m}, v{b+i}, v{b+i+1}, v{m}")
    o.append(f"v_max_f32 v{m}, v{b+15}, v{m}")
    return o
def max_x():
    m = BM
    return [f"v_mov_b32 v{m+1}, v{m}", "s_nop 1", f"v_permlane32_swap_b32 v{m}, v{m+1}", "s_nop 1", f"v_max_f32 v{m}, v{m}, v{m+1}"]
def c_ops(): return [f"v_sub_f32 v{BC+i}, 0, v{BM}" for i in range(16)]
def qmov(): return [f"v_mov_b32 v{BQ0+i}, v{BQN0+i}" for i in range(6)]
def dump(): return [f"ds_write_b128 v{VA_D}, {v(BO+4*i,4)} offset:{1024*i}" for i in range(3)]

def red1(A):
    A(f"v_add_u32 v{BM+3}, s{S_ROFF}, v{VA_R}", f"s_xor_b32 s{S_ROFF}, s{S_ROFF}, 49152", "s_waitcnt lgkmcnt(0)", "s_barrier")
    for w in range(4):
        for i in range(3): A(f"ds_read_b128 {v(BR+12*w+4*i,4)}, v{BM+3} offset:{3072*w+1024*i}")
def red2(A, lab):
    t = S_T
    A("s_waitcnt lgkmcnt(0)")
    for i in range(12): A(f"v_add_f32 v{BR+i}, v{BR+i}, v{BR+12+i}")
    for i in range(12): A(f"v_add_f32 v{BR+24+i}, v{BR+24+i}, v{BR+36+i}")
    for i in range(12): A(f"v_add_f32 v{BR+i}, v{BR+i}, v{BR+24+i}")
    l = BR + 12
    A(f"v_mov_b32 v{l}, v{BR+8}", f"v_mov_b32 v{l+1}, v{BR+8}", "s_nop 1", f"v_permlane32_swap_b32 v{l}, v{l+1}", "s_nop 1", f"v_rcp_f32 v{l}, v{l+1}")
    A(f"s_add_u32 s{t+2}, s{S_RED}, s{S_WAVE}", f"s_lshr_b32 s{t}, s{t+2}, 6", f"s_mul_i32 s{t}, s{t}, {CTXQ}",
      f"s_bfe_u32 s{t+1}, s{t+2}, 0x20004", f"s_lshl_b32 s{t+1}, s{t+1}, 10", f"s_add_u32 s{t}, s{t}, s{t+1}",
      f"s_and_b32 s{t+1}, s{t+2}, 15", f"s_lshl_b32 s{t+1}, s{t+1}, 4", f"s_add_u32 s{t}, s{t}, s{t+1}", f"s_add_u32 s{t}, s{t}, {WS_CTX + 128*4096}",
      f"s_cmp_lt_u32 s{t+2}, s{S_N}", f"s_cselect_b32 s{S_COFF}, s{t}, {OOB}", f"s_add_u32 s{S_RED}, s{S_RED}, 4")
    for i in range(12): A(f"v_mul_f32 v{BR+i}, v{BR+i}, v{l}")
    for i in range(6): A(f"v_cvt_pk_bf16_f32 v{BR+16+i}, v{BR+2*i}, v{BR+2*i+1}")
    A(f"buffer_store_dwordx2 {v(BR+16,2)}, v{VA_C}, {s(S_WS,4)}, s{S_COFF} offen",
      f"buffer_store_dwordx2 {v(BR+18,2)}, v{VA_C+1}, {s(S_WS,4)}, s{S_COFF} offen",
      "s_mov_b32 exec_hi, 0",
      f"buffer_store_dwordx2 {v(BR+20,2)}, v{VA_C+2}, {s(S_WS,4)}, s{S_COFF} offen",
      "s_mov_b32 exec_hi, -1")

def step(A, t, extra):
    par = t % 2
    S = BS[par]; P = BP[par]
    if t < 15: q = qk(BS[1-par], AK0+4*(t+1), AK1+2*(t+1), BQ0, BQ1, v(BC,16))
    else: q = qk(BS[1-par], AK0, AK1, BQN0, BQN1, v(BC,16))
    p = pv((t-1) % 16, 1-par, t == 1)
    E = [f"v_exp_f32 v{S+i}, v{S+i}" for i in range(16)]
    C = [f"v_cvt_pk_bf16_f32 v{P+i}, v{S+2*i}, v{S+2*i+1}" for i in range(8)]
    seq = [q[0], E[0], E[1], E[2], E[3], q[1], E[4], C[0], E[5], C[1], E[6], E[7], C[2], E[8], p[0], E[9], C[3], E[10], E[11], C[4], E[12], p[1], E[13], C[5], E[14], E[15], C[6]]
    for i, l in enumerate(seq):
        A(l)
        if i in extra: A(*extra[i])
    A(C[7])
    if 'end' in extra: A(*extra['end'])

def phase_b(A):
    t = S_T
    pk_n = sum(n << (8*i) for i, n in enumerate(NQ))
    pref = [sum(NQ[:i]) for i in range(8)]
    pk_p = sum(n << (8*i) for i, n in enumerate(pref))
    A(f"s_mov_b32 s{t}, {pk_n & 0xffffffff}", f"s_mov_b32 s{t+1}, {pk_n >> 32}", f"s_lshl_b32 s{t+4}, s{S_QB}, 3",
      f"s_lshr_b64 s[{t}:{t+1}], s[{t}:{t+1}], s{t+4}", f"s_and_b32 s{S_N}, s{t}, 0xff",
      f"s_cmp_eq_u32 s{S_N}, 0", "s_cbranch_scc1 L_b_done",
      f"s_mov_b32 s{t+2}, {pk_p & 0xffffffff}", f"s_mov_b32 s{t+3}, {pk_p >> 32}",
      f"s_lshr_b64 s[{t+2}:{t+3}], s[{t+2}:{t+3}], s{t+4}", f"s_and_b32 s{t+2}, s{t+2}, 0xff", f"s_lshl_b32 s{t+2}, s{t+2}, 5",
      f"s_mul_i32 s{t}, s{S_HEAD}, s{S_N}", f"s_add_u32 s{S_Q}, s{t}, s{t+2}",
      f"s_mov_b32 s{S_RED}, s{S_Q}", f"s_add_u32 s{S_N}, s{S_N}, s{S_Q}", f"s_mov_b32 s{S_I}, 0")
    WT = 122880
    A(f"s_sub_u32 s{t+6}, s2, 32", f"s_cmp_ge_u32 s{t+6}, 148", "s_cbranch_scc1 L_wt_skip1")
    A(f"s_cmp_lt_u32 s{t+6}, 128", f"s_cselect_b32 s36, s{P_WO}, s{P_BWO}", f"s_cselect_b32 s37, s{P_WO+1}, s{P_BWO+1}",
      f"s_mov_b32 s38, {640*1280}", f"s_cselect_b32 s38, {4096*1280}, s38", "s_mov_b32 s39, 0x00020000",
      f"s_and_b32 s{t}, s{t+6}, 127", f"s_mul_i32 s{t}, s{t}, 40960", f"s_mul_i32 s{t+1}, s{S_WAVE}, 10240", f"s_add_u32 s{t}, s{t}, s{t+1}",
      f"s_add_u32 s{t+1}, s{t+1}, {WT}")
    for i in range(10):
        if i % 4 == 0: A(f"s_add_u32 m0, s{t+1}, {1024*i}", f"s_add_u32 s{t+2}, s{t}, {1024*i}")
        A(f"buffer_load_dwordx4 v{V_L16}, s[36:39], s{t+2} offen offset:{1024*(i%4)} lds")
    A.label("L_wt_skip1")
    A(f"v_and_b32 v{V_T}, 31, v{V_LANE}", f"v_cmp_eq_u32 vcc, 20, v{V_T}", f"v_mov_b32 v{V_T+1}, 0x3f803f80", "s_nop 0", f"v_cndmask_b32 v{V_T+1}, 0, v{V_T+1}, vcc")
    for i in range(32): A(f"v_accvgpr_write_b32 a{AK1+i}, 0")
    A(f"v_accvgpr_write_b32 a{AKC1}, 0", f"v_accvgpr_write_b32 a{AKC1+1}, 0")
    for i in range(128): A(f"v_accvgpr_write_b32 a{AV+i}, v{V_T+1}")
    A(f"v_mov_b32 v{BQN1}, 0", f"v_mov_b32 v{BQN1+1}, 0")
    A(f"v_lshrrev_b32 v{V_T+2}, 5, v{V_LANE}", f"v_mul_u32_u24 v{V_T}, 5, v{V_T}")
    A(f"v_lshl_add_u32 v{V_T+3}, v{V_T+2}, 1, v{V_T}"); kappa_addr(A, VA_Q, V_T+3, 10)
    A(f"v_add_u32 v{V_T+3}, 1, v{V_T+3}"); kappa_addr(A, VA_Q+1, V_T+3, 10)
    A(f"v_add_u32 v{V_T+3}, 4, v{V_T}"); kappa_addr(A, VA_Q+2, V_T+3, 10); kappa_addr(A, VA_C+2, V_T+3, 12)
    A(f"v_add_u32 v{V_T+3}, v{V_T+2}, v{V_T}"); kappa_addr(A, VA_C, V_T+3, 12)
    A(f"v_add_u32 v{V_T+3}, 2, v{V_T+3}"); kappa_addr(A, VA_C+1, V_T+3, 12)
    A(*qoff_ops(S_Q, S_QOFF)); A(*qloads())
    A(f"s_mov_b32 s{t}, {WS_KB}", f"buffer_load_dwordx4 {a(AKC0,4)}, v{V_L16}, {s(S_WS,4)}, s{t} offen",
      f"v_lshlrev_b32 v{V_T+3}, 3, v{V_LANE}", f"s_mov_b32 s{t+1}, {WS_KB1}", "s_mov_b32 exec_hi, 0",
      f"buffer_load_dwordx2 {a(AKC1,2)}, v{V_T+3}, {s(S_WS,4)}, s{t+1} offen", "s_mov_b32 exec_hi, -1")
    A(f"s_lshl_b32 s{t}, s{S_WAVE}, 14", f"s_add_u32 s{t}, s{t}, {WS_KB}", f"s_lshl_b32 s{t+1}, s{S_WAVE}, 12", f"s_add_u32 s{t+1}, s{t+1}, {WS_KB1}",
      f"s_lshl_b32 s{t+2}, s{S_WAVE}, 15", f"s_add_u32 s{t+2}, s{t+2}, {WS_VB}")
    for i in range(16):
        A(f"buffer_load_dwordx4 {a(AK0+4*i,4)}, v{V_L16}, {s(S_WS,4)}, s{t} offen offset:{1024*(i%4)}")
        if i % 4 == 3: A(f"s_add_u32 s{t}, s{t}, 4096")
    A("s_mov_b32 exec_hi, 0")
    for i in range(16): A(f"buffer_load_dwordx2 {a(AK1+2*i,2)}, v{V_T+3}, {s(S_WS,4)}, s{t+1} offen offset:{256*i}")
    A("s_mov_b32 exec_lo, 0xfffff", "s_mov_b32 exec_hi, 0xfffff")
    for i in range(32):
        A(f"buffer_load_dwordx4 {a(AV+4*i,4)}, v{V_L16}, {s(S_WS,4)}, s{t+2} offen offset:{1024*(i%4)}")
        if i % 4 == 3: A(f"s_add_u32 s{t+2}, s{t+2}, 4096")
    A("s_mov_b64 exec, -1")
    A(f"s_mul_i32 s{t}, s{S_WAVE}, 3072", f"v_add_u32 v{VA_W}, s{t}, v{V_L16}", f"s_mul_i32 s{t}, s{S_WAVE}, 12288", f"v_add_u32 v{VA_R}, s{t}, v{V_L16}",
      f"s_mov_b32 s{S_DOFF}, {7*12288}", f"s_mov_b32 s{S_ROFF}, 0")
    A(f"s_cmp_ge_u32 s{t+6}, 148", "s_cbranch_scc1 L_wt_skip2")
    A("s_waitcnt vmcnt(63)", "s_waitcnt vmcnt(63)", "s_barrier")
    A(f"v_lshrrev_b32 v{BR}, 2, v{V_LANE}", f"v_mul_u32_u24 v{BR}, 1280, v{BR}", f"v_and_b32 v{BR+1}, 3, v{V_LANE}", f"v_lshl_add_u32 v{BR}, v{BR+1}, 3, v{BR}",
      f"s_mul_i32 s{t}, s{S_WAVE}, 320", f"s_add_u32 s{t}, s{t}, {WT}", f"v_add_u32 v{BR}, s{t}, v{BR}")
    for i in range(10):
        for j in range(2): A(f"ds_read_b64_tr_b16 {v(16+4*i+2*j,2)}, v{BR} offset:{32*i + 20480*j}")
    A(f"s_mul_i32 s{t}, s{t+6}, 40960", f"s_mul_i32 s{t+1}, s{S_WAVE}, 10240", f"s_add_u32 s{t}, s{t}, s{t+1}", f"s_add_u32 s{t}, s{t}, {WS_WOF}", "s_waitcnt lgkmcnt(0)")
    for i in range(10):
        A(f"buffer_store_dwordx4 {v(16+4*i,4)}, v{V_L16}, {s(S_WS,4)}, s{t} offen offset:{1024*(i%4)}")
        if i % 4 == 3: A(f"s_add_u32 s{t}, s{t}, 4096")
    A.label("L_wt_skip2")
    A("s_barrier")
    A("s_waitcnt vmcnt(0)")
    stamp(A, S_WS, V_T+2)
    A(*qk(BSM, AKC0, AKC1, BQN0, BQN1, "0")); A("s_nop 7", "s_nop 3"); A(*max_ops()); A(*max_x()); A(*c_ops()); A("s_nop 1")
    A(*qk(BS[0], AK0, AK1, BQN0, BQN1, v(BC,16))); A(*qmov())
    A(f"s_add_u32 s{S_Q}, s{S_Q}, 1"); A(*qoff_ops(S_Q, S_QOFF)); A(*qloads()); A("s_nop 3")
    A.label("L_b_loop")
    for st in range(16):
        ex = {}
        if st == 0:
            ex[0] = [f"v_add_u32 v{VA_D}, s{S_DOFF}, v{VA_W}"]
            ex[5] = [f"s_add_u32 s{S_DOFF}, s{S_DOFF}, 12288"]
            ex[14] = [f"s_cmp_ge_u32 s{S_DOFF}, 98304", f"s_cselect_b32 s{S_DOFF}, 0, s{S_DOFF}"]
        if st == 1 and 'nodump' not in X:
            ex[7] = dump()
        if st == 8: ex[14] = qk(BSM, AKC0, AKC1, BQN0, BQN1, "0")[:1]; ex[21] = qk(BSM, AKC0, AKC1, BQN0, BQN1, "0")[1:]
        if st == 10: ex[5] = max_ops()
        if st == 11: ex[5] = max_x()
        if st == 14: ex[21] = c_ops()
        if st == 15:
            ex[14] = qmov() + [f"s_add_u32 s{S_Q}, s{S_Q}, 1"] + qoff_ops(S_Q, S_QOFF)
            if 'noq' not in X: ex[21] = qloads()
            ex['end'] = [f"s_add_u32 s{S_I}, s{S_I}, 1", f"s_cmp_le_u32 s{S_Q}, s{S_N}"]
        if st == 2 and 'nored' not in X:
            A(f"s_and_b32 s{t+5}, s{S_I}, 3", f"s_cmp_eq_u32 s{S_I}, 0", f"s_cselect_b32 s{t+5}, 1, s{t+5}", f"s_cmp_lg_u32 s{t+5}, 0", "s_cbranch_scc1 L_b_nored1")
            red1(A); A.label("L_b_nored1")
        if st == 3 and 'novm' not in X: A("s_waitcnt vmcnt(0)")
        if st == 4 and 'nored' not in X:
            A(f"s_cmp_lg_u32 s{t+5}, 0", "s_cbranch_scc1 L_b_nored2")
            red2(A, 0); A.label("L_b_nored2")
        step(A, st, ex)
    A("s_cbranch_scc1 L_b_loop")
    A("s_nop 1"); A(*pv(15, 1, False))
    A(f"v_add_u32 v{VA_D}, s{S_DOFF}, v{VA_W}", "s_nop 7", "s_nop 3"); A(*dump())
    red1(A); red2(A, 1)
    A.label("L_b_done")
```

```python
from asmlib import *
P3_LDS = 122880
S_WS, S_OUT = 8, 12
S_WAVE, S_QG, S_NG, S_C, S_W, S_CNT, S_LEFT = 20, 21, 22, 23, 24, 25, 26
S_T = 32
V_LANE, V_L16, V_T = 1, 2, 4
RING = 16
def slot(n): return RING + 36*(n % 4)
def loads(n):
    b = slot(n)
    return [f"buffer_load_dwordx4 {v(b+4*i,4)}, v{V_L16}, {s(S_WS,4)}, s{S_C} offen offset:{1024*i}" for i in range(4)] + \
           [f"buffer_load_dwordx4 {v(b+16+4*i,4)}, v{V_L16 + (1 if i == 4 else 0)}, {s(S_WS,4)}, s{S_W} offen offset:{1024*(i%4)}" for i in range(5)]
def adv(): return [f"s_add_u32 s{S_C}, s{S_C}, 4096", f"s_add_u32 s{S_W}, s{S_W}, 40960"]
def step(A, n, acc0, first, pre, inloop=False):
    st = Stream(); b = slot(n)
    for nb in range(5):
        for qt in range(4):
            d = a(acc0 + (nb*4+qt)*4, 4)
            st.mfma(f"v_mfma_f32_16x16x32_bf16 {d}, {v(b+16+4*nb,4)}, {v(b+4*qt,4)}, {'0' if first else d}")
    A("s_waitcnt vmcnt(18)")
    for l in pre: st.shadow(0, l)
    for i, l in enumerate(loads(n+3)): st.shadow(1 + 2*i, l)
    for i, l in enumerate(adv()): st.shadow(18 + i, l)
    st.emit(A)

def gen_p3():
    A = Asm(); t = S_T
    A("s_cmp_ge_u32 s2, 256", "s_cbranch_scc1 L_p3_end")
    load_kernargs(A)
    A(f"v_and_b32 v{V_LANE}, 63, v0", f"v_lshrrev_b32 v{V_T}, 6, v0", f"v_lshlrev_b32 v{V_L16}, 4, v{V_LANE}", f"v_readfirstlane_b32 s{S_WAVE}, v{V_T}",
      f"v_add_u32 v{V_L16+1}, 4096, v{V_L16}")
    A(f"s_and_b32 s{t}, s2, 3", f"s_lshl_b32 s{t}, s{t}, 3", f"s_bfe_u32 s{t+1}, s2, 0x30003", f"s_add_u32 s{S_QG}, s{t}, s{t+1}",
      f"s_bfe_u32 s{t}, s2, 0x10002", f"s_lshl_b32 s{t}, s{t}, 2", f"s_lshr_b32 s{t+1}, s2, 6", f"s_add_u32 s{S_NG}, s{t}, s{t+1}")
    A(f"s_mul_i32 s{t}, s{S_QG}, {CTXQ}", f"s_add_u32 s{t}, s{t}, {WS_CTX}", f"s_mul_i32 s{t+1}, s{S_NG}, 5120", f"s_add_u32 s{t+1}, s{t+1}, {WS_WOF}",
      f"s_mul_i32 s{t+2}, s{S_WAVE}, 5", f"s_add_u32 s{t+2}, s{t+2}, 128",
      f"s_lshl_b32 s{S_C}, s{t+2}, 12", f"s_add_u32 s{S_C}, s{S_C}, s{t}", f"s_mul_i32 s{S_W}, s{t+2}, 40960", f"s_add_u32 s{S_W}, s{S_W}, s{t+1}",
      f"s_lshl_b32 s{t+4}, s{S_WAVE}, 17", f"s_add_u32 s{t+4}, s{t+4}, s{t}", f"s_mul_i32 s{t+5}, s{S_WAVE}, {32*40960}", f"s_add_u32 s{t+5}, s{t+5}, s{t+1}")
    A("s_waitcnt lgkmcnt(0)")
    srd(A, S_WS, P_WS, WS_SIZE); srd(A, S_OUT, P_OUT, 2048*1280*2)
    stamp_init(A, 2, S_WS, S_WAVE); stamp(A, S_WS, V_T, real=True); stamp(A, S_WS, V_T)
    if DIAG: A("s_waitcnt vmcnt(0)")
    for n in range(3): A(*loads(n)); A(*adv())
    for n in range(5):
        pre = [f"s_mov_b32 s{S_C}, s{t+4}", f"s_mov_b32 s{S_W}, s{t+5}"] if n == 2 else []
        step(A, n, 0, n == 0, pre)
    for n in range(5, 9): step(A, n, 80, n == 5, [])
    A(f"s_mov_b32 s{S_CNT}, 6")
    A.label("L_p3_loop")
    for n in range(9, 13): step(A, n, 80, False, [f"s_sub_u32 s{S_CNT}, s{S_CNT}, 1"] if n == 12 else [])
    A(f"s_cmp_lg_u32 s{S_CNT}, 0", "s_cbranch_scc1 L_p3_loop")
    for n in range(33, 37):
        st = Stream(); b = slot(n)
        for nb in range(5):
            for qt in range(4):
                d = a(80 + (nb*4+qt)*4, 4)
                st.mfma(f"v_mfma_f32_16x16x32_bf16 {d}, {v(b+16+4*nb,4)}, {v(b+4*qt,4)}, {d}")
        A(f"s_waitcnt vmcnt({[18, 18, 9, 0][n-33]})")
        if n == 33:
            for i, l in enumerate(loads(36)): st.shadow(1 + 2*i, l)
        st.emit(A)
    stamp(A, S_WS, V_T)
    A("s_nop 7")
    for qt in range(4):
        A(f"s_cmp_eq_u32 s{S_WAVE}, {qt}", f"s_cbranch_scc1 L_p3_own{qt}")
        A(f"s_sub_u32 s{t}, s{S_WAVE}, {qt+1}", f"s_and_b32 s{t}, s{t}, 3", f"s_mul_i32 s{t}, s{t}, 10240", f"s_add_u32 s{t}, s{t}, {qt*30720}", f"v_add_u32 v{V_T}, s{t}, v{V_L16}")
        for pnb in range(10): A(f"ds_write_b128 v{V_T}, {a((pnb*4+qt)*4,4)} offset:{1024*pnb}")
        A(f"s_branch L_p3_next{qt}")
        A.label(f"L_p3_own{qt}")
        for pnb in range(10):
            for r in range(4): A(f"v_accvgpr_read_b32 v{16+4*pnb+r}, a{(pnb*4+qt)*4+r}")
        A.label(f"L_p3_next{qt}")
    A(f"s_mul_i32 s{t}, s{S_WAVE}, 30720", f"v_add_u32 v{V_T}, s{t}, v{V_L16}", "s_waitcnt lgkmcnt(0)", "s_barrier")
    for sidx in range(3):
        for pnb in range(10): A(f"ds_read_b128 {v(56+40*sidx+4*pnb,4)}, v{V_T} offset:{10240*sidx+1024*pnb}")
    for sidx in range(3):
        A(f"s_waitcnt lgkmcnt({min(15, 10*(2-sidx))})")
        for i in range(0, 40, 2): A(f"v_pk_add_f32 {v(16+i,2)}, {v(16+i,2)}, {v(56+40*sidx+i,2)}")
    for i in range(20): A(f"v_cvt_pk_bf16_f32 v{56+i}, v{16+2*i}, v{17+2*i}")
    RS = 336
    A(f"v_and_b32 v{V_T+1}, 15, v{V_LANE}", f"v_mul_u32_u24 v{V_T+1}, {RS}, v{V_T+1}", f"v_lshrrev_b32 v{V_T+2}, 4, v{V_LANE}", f"v_lshl_add_u32 v{V_T+1}, v{V_T+2}, 3, v{V_T+1}",
      f"v_add_u32 v{V_T+1}, s{t}, v{V_T+1}")
    for pnb in range(10): A(f"ds_write_b64 v{V_T+1}, {v(56+2*pnb,2)} offset:{32*pnb}")
    A(f"s_lshl_b32 s{t+1}, s{S_QG}, 6", f"s_lshl_b32 s{t+2}, s{S_WAVE}, 4", f"s_add_u32 s{t+1}, s{t+1}, s{t+2}", f"s_mul_i32 s{t+1}, s{t+1}, 2560",
      f"s_mul_i32 s{t+2}, s{S_NG}, 160", f"s_add_u32 s{t+1}, s{t+1}, s{t+2}", f"s_mov_b32 s{t+3}, {(1 << 16)//20 + 1}")
    for i in range(5):
        c, row, cc, la, ga = 80, 81, 82, 84+i, 90+i
        A(f"v_add_u32 v{c}, {64*i}, v{V_LANE}", f"v_mul_u32_u24 v{row}, s{t+3}, v{c}", f"v_lshrrev_b32 v{row}, 16, v{row}",
          f"v_mul_u32_u24 v{cc}, 20, v{row}", f"v_sub_u32 v{cc}, v{c}, v{cc}",
          f"v_mul_u32_u24 v{la}, {RS}, v{row}", f"v_lshl_add_u32 v{la}, v{cc}, 4, v{la}", f"v_add_u32 v{la}, s{t}, v{la}",
          f"v_mul_u32_u24 v{ga}, 2560, v{row}", f"v_lshl_add_u32 v{ga}, v{cc}, 4, v{ga}",
          f"v_cmp_gt_u32 vcc, 10, v{cc}", f"v_add_u32 v83, 1280, v{ga}", f"v_subrev_u32 v{ga}, 160, v{ga}", f"v_cndmask_b32 v{ga}, v{ga}, v83, vcc")
    A("s_waitcnt lgkmcnt(0)")
    for i in range(5): A(f"ds_read_b128 {v(16+4*i,4)}, v{84+i}")
    for i in range(5):
        A(f"s_waitcnt lgkmcnt({4-i})", f"buffer_store_dwordx4 {v(16+4*i,4)}, v{90+i}, {s(S_OUT,4)}, s{t+1} offen")
    if DIAG: A("s_waitcnt vmcnt(0)")
    stamp(A, S_WS, V_T); stamp(A, S_WS, V_T, real=True)
    A.label("L_p3_end")
    A("s_endpgm")
    return khead("p3_kernel") + A.text() + kdesc("p3_kernel", 416, 256)
```

```python
import sys
from asmlib import *
import p1
NAME = "concat_heads__compressed_kv_cla__grouped_kv_mqa__prompt"
def build(which=("p1",)):
    hdr = open(f"cdna_kernels/{NAME}.s.ref").read().split("; Override launch")[0]
    launches = []; body = ""
    if "p1" in which:
        launches.append(f"; @launch kernel=p1_kernel grid=(256,1,1) block=(256,1,1) lds={p1.P1_LDS}"); body += p1.gen_p1()
    if "p2" in which:
        import p2
        launches.append(f"; @launch kernel=p2_kernel grid=(256,1,1) block=(256,1,1) lds={p2.P2_LDS}"); body += p2.gen_p2()
    if "p3" in which:
        import p3
        launches.append(f"; @launch kernel=p3_kernel grid=(256,1,1) block=(256,1,1) lds={p3.P3_LDS}"); body += p3.gen_p3()
    return hdr + "\n".join(launches) + '\n.amdgcn_target "amdgcn-amd-amdhsa--gfx950"\n.text\n' + body
if __name__ == "__main__":
    which = sys.argv[1].split(",") if len(sys.argv) > 1 else ("p1", "p2", "p3")
    out = sys.argv[2] if len(sys.argv) > 2 else f"cdna_kernels/{NAME}.s"
    open(out, "w").write(build(which))
    print("wrote", out)
```
